```python
import torch

def _softmax(x, axis=-1):
    return torch.softmax(x, dim=axis)
def _gelu(x):
    return torch.nn.functional.gelu(x, approximate="tanh")
def _silu(x):
    return torch.nn.functional.silu(x)
def _sigmoid(x):
    return torch.sigmoid(x)
def _layernorm(x, axis=-1, eps=1e-5):
    m = x.mean(dim=axis, keepdim=True)
    v = x.var(dim=axis, keepdim=True, unbiased=False)
    return (x - m) / torch.sqrt(v + eps)
def _scatter_add(tgt, idx, src, axis=0):
    return tgt.clone().index_add_(axis, idx, src)
def _segment_sum(src, seg, n):
    out = torch.zeros((n,) + src.shape[1:], dtype=src.dtype)
    return out.index_add_(0, seg, src)
def _pad(x, pw):
    flat = tuple(v for pair in reversed(pw) for v in pair)
    return torch.nn.functional.pad(x, flat)

kernel_name = 'recurrent_scan__sliding_block_cached__glu_gated_glu__prompt'

def setup_inputs():

    _w = (lambda a: (lambda t: t.to(torch.bfloat16) if t.is_floating_point() else t)(torch.as_tensor(a)))
    def _A_setup():
        B, Sq, D = 1, 2048, 512
        Hq, Hkv, Sk, Dh = 32, 32, 2048, 128
        assert Hq % Hkv == 0, (Hq, Hkv)
        return {
            "x": _w((lambda *s: torch.randn(*s, dtype=torch.bfloat16) * 0.05)(B, Sq, D)),
            "k_cache": _w((lambda *s: torch.randn(*s, dtype=torch.bfloat16) * 0.8)(B, Hkv, Sk, Dh)),
            "v_cache": _w((lambda *s: torch.randn(*s, dtype=torch.bfloat16) * 0.2)(B, Hkv, Sk, Dh)),
            "wq": _w((lambda *s: torch.randn(*s, dtype=torch.bfloat16) * 0.8)(D, Hq * Dh) * (D ** -0.5)),
            "wo": _w((lambda *s: torch.randn(*s, dtype=torch.bfloat16) * 0.2)(Hq * Dh, D) * ((Hq * Dh) ** -0.5)),
        }
    _A_in = _A_setup()

    def _B_setup():
        B, S, D, F = 1, 2048, 512, 1376
        return {
            "x": _w((lambda *s: torch.randn(*s, dtype=torch.bfloat16) * 0.05)(B, S, D)),
            "w_gate": _w((lambda *s: torch.randn(*s, dtype=torch.bfloat16) * 0.2)(D, F)),
            "w_up": _w((lambda *s: torch.randn(*s, dtype=torch.bfloat16) * 0.1)(D, F)),
            "w_down": _w((lambda *s: torch.randn(*s, dtype=torch.bfloat16) * 0.1)(F, D)),
        }
    _B_in = _B_setup()

    return {
        "A_x": _A_in["x"],
        "A_k_cache": _A_in["k_cache"],
        "A_v_cache": _A_in["v_cache"],
        "A_wq": _A_in["wq"],
        "A_wo": _A_in["wo"],
        "B_x": _B_in["x"],
        "B_w_gate": _B_in["w_gate"],
        "B_w_up": _B_in["w_up"],
        "B_w_down": _B_in["w_down"],
    }

def reference(A_x, A_k_cache, A_v_cache, A_wq, A_wo, B_x, B_w_gate, B_w_up, B_w_down):
    def _A_ref(x, k_cache, v_cache, wq, wo):
        B, Sq, D = x.shape
        Hq, Dh = 32, 128
        Hkv, Sk = k_cache.shape[1], k_cache.shape[2]
        W = min(4096, max(256, Sk // 4))
        rep = Hq // Hkv
        q = (lambda x, *d: x.permute(*d))((x @ wq).reshape(B, Sq, Hq, Dh), 0, 2, 1, 3)
        k = (lambda x, n, axis: torch.repeat_interleave(x, n, dim=axis))(k_cache[:, :, Sk - W:, :], rep, axis=1)
        v = (lambda x, n, axis: torch.repeat_interleave(x, n, dim=axis))(v_cache[:, :, Sk - W:, :], rep, axis=1)
        scores = torch.einsum("bhqd,bhkd->bhqk", q, k) * (Dh ** -0.5)
        p = _softmax(scores, axis=-1)
        o = torch.einsum("bhqk,bhkd->bhqd", p, v)
        return (lambda x, *d: x.permute(*d))(o, 0, 2, 1, 3).reshape(B, Sq, Hq * Dh) @ wo

    def _B_ref(x, w_gate, w_up, w_down):
        g = torch.einsum("bsd,df->bsf", x, w_gate)
        u = torch.einsum("bsd,df->bsf", x, w_up)
        h = _sigmoid(g) * u
        return torch.einsum("bsf,fd->bsd", h, w_down)

    x = A_x
    xn = _layernorm(x, axis=-1)
    s = _A_ref(xn, A_k_cache, A_v_cache, A_wq, A_wo)
    g = _silu(_B_ref(xn, B_w_gate, B_w_up, B_w_down))
    return x + s * g
```

```python
class Asm:
    def __init__(self):
        self.L = []
    def __call__(self, s):
        if isinstance(s, (list, tuple)):
            for x in s: self(x)
        else:
            self.L.append("  " + s)
    def label(self, s):
        self.L.append(s + ":")
    def raw(self, s):
        self.L.append(s)
    def comment(self, s):
        self.L.append("  ; " + s)
    def text(self):
        return "\n".join(self.L) + "\n"

def v(i, n=1):
    return f"v{i}" if n == 1 else f"v[{i}:{i+n-1}]"
def a(i, n=1):
    return f"a{i}" if n == 1 else f"a[{i}:{i+n-1}]"
def s(i, n=1):
    return f"s{i}" if n == 1 else f"s[{i}:{i+n-1}]"

class RegAlloc:
    def __init__(self, start, limit, kind):
        self.next = start; self.limit = limit; self.kind = kind; self.names = {}
        self.hi = start
    def alloc(self, name, n=1, align=1):
        x = (self.next + align - 1) // align * align
        assert x + n <= self.limit, f"out of {self.kind} regs allocating {name} ({x}+{n} > {self.limit})"
        self.next = x + n
        self.hi = max(self.hi, self.next)
        self.names[name] = (x, n)
        return x
    def mark(self): return self.next
    def reset(self, m): self.next = m

def interleave(out, mfmas, gaps, tail=None):
    assert len(gaps) == len(mfmas)
    for m, g in zip(mfmas, gaps):
        out(m)
        for x in g: out(x)
    if tail:
        for x in tail: out(x)

def spread(gaps, items, lo, hi):
    n = len(items); m = hi - lo
    for i, it in enumerate(items):
        g = lo + (i * m) // n
        if isinstance(it, str): gaps[g].append(it)
        else: gaps[g].extend(it)

def kernel_header(out, name):
    out.raw(".text")
    out.raw(f".globl {name}")
    out.raw(".p2align 8")
    out.raw(f".type {name},@function")
    out.label(name)

def kernel_desc(out, name, nvgpr, accum, nsgpr=102):
    out.raw('.section .rodata,"a"')
    out.raw(".p2align 6")
    out.raw(f".amdhsa_kernel {name}")
    out.raw(f"  .amdhsa_next_free_vgpr {nvgpr}")
    out.raw(f"  .amdhsa_next_free_sgpr {nsgpr}")
    out.raw(f"  .amdhsa_accum_offset {accum}")
    out.raw("  .amdhsa_group_segment_fixed_size 0")
    out.raw("  .amdhsa_kernarg_size 96")
    out.raw("  .amdhsa_user_sgpr_count 2")
    out.raw("  .amdhsa_user_sgpr_kernarg_segment_ptr 1")
    out.raw("  .amdhsa_system_sgpr_workgroup_id_x 1")
    out.raw(".end_amdhsa_kernel")

def srd(out, d, base, nbytes, shift=0):
    if shift == 0:
        out(f"s_mov_b32 s{d}, s{base}")
        out(f"s_mov_b32 s{d+1}, s{base+1}")
    elif shift > 0:
        out(f"s_add_u32 s{d}, s{base}, {shift}")
        out(f"s_addc_u32 s{d+1}, s{base+1}, 0")
    else:
        out(f"s_sub_u32 s{d}, s{base}, {-shift}")
        out(f"s_subb_u32 s{d+1}, s{base+1}, 0")
    out(f"s_mov_b32 s{d+2}, {nbytes}")
    out(f"s_mov_b32 s{d+3}, 0x00020000")
```

```python
import sys, math
from asmlib import *

KN = "recurrent_scan__sliding_block_cached__glu_gated_glu__prompt"
WS_XN = 0
WS_O = 0x400000
WS_H = 0x1400000
WS_DBG = 0x2000000
WS_Q = 0x3000000
LOG2E = 1.4426950408889634
import struct
def f32(x): return "0x%08x" % struct.unpack("<I", struct.pack("<f", x))[0]

OPT = dict(stamps=False, dumpq=False)

def gen_k0(o):
    name = "ln_kernel"
    kernel_header(o, name)
    o("s_cmp_ge_u32 s2, 512"); o("s_cbranch_scc1 L_k0_end")
    o("s_load_dwordx2 s[4:5], s[0:1], 0")
    o("s_load_dwordx2 s[6:7], s[0:1], 88")
    o("s_lshl_b32 s3, s2, 12")
    o("v_lshlrev_b32 v1, 4, v0")
    o("v_add_u32 v1, s3, v1")
    o("s_waitcnt lgkmcnt(0)")
    srd(o, 8, 4, 2097152)
    srd(o, 12, 6, 2097152, WS_XN)
    o("buffer_load_dwordx4 v[4:7], v1, s[8:11], 0 offen")
    o("s_waitcnt vmcnt(0)")
    for i in range(4):
        o(f"v_lshlrev_b32 v{8+2*i}, 16, v{4+i}")
        o(f"v_and_b32 v{9+2*i}, 0xffff0000, v{4+i}")
    def wave_sum(dst_s, r):
        for sh in (1, 2, 4, 8):
            o("s_nop 1")
            o(f"v_add_f32_dpp v{r}, v{r}, v{r} row_shr:{sh} row_mask:0xf bank_mask:0xf bound_ctrl:0")
        o("s_nop 1")
        o(f"v_add_f32_dpp v{r}, v{r}, v{r} row_bcast:15 row_mask:0xa bank_mask:0xf")
        o("s_nop 1")
        o(f"v_add_f32_dpp v{r}, v{r}, v{r} row_bcast:31 row_mask:0xc bank_mask:0xf")
        o("s_nop 1")
        o(f"v_readlane_b32 s{dst_s}, v{r}, 63")
        o("s_nop 3")
    o("v_add_f32 v16, v8, v9")
    for i in range(10, 16): o(f"v_add_f32 v16, v16, v{i}")
    wave_sum(20, 16)
    o(f"v_mov_b32 v17, s20")
    o(f"v_mul_f32 v17, {f32(1.0/512)}, v17")
    for i in range(8, 16): o(f"v_sub_f32 v{i}, v{i}, v17")
    o("v_mul_f32 v16, v8, v8")
    for i in range(9, 16): o(f"v_fmac_f32 v16, v{i}, v{i}")
    wave_sum(21, 16)
    o("v_mov_b32 v17, s21")
    o(f"v_mov_b32 v18, {f32(1e-5)}")
    o(f"v_fmac_f32 v18, {f32(1.0/512)}, v17")
    o("v_rsq_f32 v18, v18")
    o("s_nop 0")
    for i in range(8, 16): o(f"v_mul_f32 v{i}, v{i}, v18")
    for i in range(4): o(f"v_cvt_pk_bf16_f32 v{4+i}, v{8+2*i}, v{9+2*i}")
    o("buffer_store_dwordx4 v[4:7], v1, s[12:15], 0 offen")
    o.label("L_k0_end")
    o("s_endpgm")
    kernel_desc(o, name, 24, 24, 32)

SLOT = 34048
NS = 4
XREG = 0
WREG = 16640
def gen_k1(o):
    name = "attn_kernel"
    kernel_header(o, name)
    sX, sWQ, sG, sU, sK, sV, sO, sH = 4, 8, 12, 16, 20, 24, 28, 32
    sWave, sHead, sRb, sFc = 36, 37, 38, 39
    sOffX, sOffW, sOffG = 40, 41, 42
    sM0a, sM0b = 43, 44
    sDelta = 45
    sCnt = 46
    sOffKV = 47
    sT0, sT1, sT2, sT3 = 48, 49, 50, 51
    sDslot = 52
    sRslot = 53
    sThr = 54
    sSlotP, sSlotN, sW128 = 55, 56, 57
    sStamp = 60
    sP = 80
    nstamp = [0]
    def stamp():
        if OPT["stamps"]:
            i = nstamp[0]; nstamp[0] += 1
            o(f"s_memtime s[{sStamp+2*i}:{sStamp+2*i+1}]")
    V = RegAlloc(1, 256, "v")
    vLane = V.alloc("lane"); vTmp = V.alloc("tmp", 8)
    vAX = V.alloc("AX"); vAW = V.alloc("AW"); vAG = V.alloc("AG"); vA6 = V.alloc("A6", 2)
    vAK = V.alloc("AK"); vAV = V.alloc("AV")
    vDX = V.alloc("DX", 4); vDW = V.alloc("DW", 2); vDG = V.alloc("DG"); vDU = V.alloc("DU")
    vDK = V.alloc("DK", 4); vDV = V.alloc("DV", 4)
    vSt = V.alloc("StoreOff")
    mark = V.mark()
    vB = [[V.alloc(f"B{st}{nt}", 4, 4) for nt in range(2)] for st in range(2)]
    vA = [[V.alloc(f"A{st}{t}", 4, 4) for t in range(7)] for st in range(2)]
    vGU = [[V.alloc(f"GU{t}{nt}", 16, 4) for nt in range(2)] for t in range(3)]
    aQ = [[(T * 2 + nt) * 16 for nt in range(2)] for T in range(4)]

    o("s_cmp_ge_u32 s2, 256"); o("s_cbranch_scc1 L_k1_end")
    o(f"s_load_dwordx8 s[{sP}:{sP+7}], s[0:1], 0")
    o(f"s_load_dwordx4 s[{sP+8}:{sP+11}], s[0:1], 48")
    o(f"s_load_dwordx2 s[{sP+12}:{sP+13}], s[0:1], 88")
    stamp()
    o(f"v_and_b32 v{vLane}, 63, v0")
    o(f"v_lshrrev_b32 v{vTmp}, 6, v0")
    o("s_and_b32 s3, s2, 7")
    o(f"v_readfirstlane_b32 s{sWave}, v{vTmp}")
    o("s_lshl_b32 s3, s3, 2")
    o(f"s_bfe_u32 s{sT0}, s2, 0x20003")
    o(f"s_add_u32 s{sHead}, s3, s{sT0}")
    o(f"s_lshr_b32 s{sRb}, s2, 5")
    o(f"s_mul_i32 s{sT0}, s{sHead}, {83*33826}")
    o(f"s_lshr_b32 s{sFc}, s{sT0}, 20")
    t0, t1, t2, t3, t4 = vTmp, vTmp+1, vTmp+2, vTmp+3, vTmp+4
    L = vLane
    o(f"v_bfe_u32 v{t0}, v{L}, 2, 2")
    o(f"v_lshrrev_b32 v{t1}, 4, v{L}")
    o(f"v_lshl_add_u32 v{t0}, v{t1}, 4, v{t0}")
    o(f"s_lshl_b32 s{sT0}, s{sRb}, 8")
    o(f"s_lshl_b32 s{sT1}, s{sWave}, 6")
    o(f"s_add_u32 s{sT0}, s{sT0}, s{sT1}")
    o(f"v_add_u32 v{t0}, s{sT0}, v{t0}")
    o(f"v_lshlrev_b32 v{t0}, 10, v{t0}")
    o(f"v_and_b32 v{t2}, 3, v{L}")
    o(f"v_lshl_add_u32 v{vDX}, v{t2}, 4, v{t0}")
    for i in range(1, 4): o(f"v_add_u32 v{vDX+i}, {i*3056}, v{vDX}")
    o(f"v_and_b32 v{t2}, 15, v{L}")
    o(f"v_lshlrev_b32 v{t2}, 4, v{t2}")
    o(f"s_lshr_b32 s{sT0}, s{sWave}, 1")
    o(f"s_lshl_b32 s{sT0}, s{sT0}, 4")
    o(f"s_and_b32 s{sT1}, s{sWave}, 1")
    o(f"s_lshl_b32 s{sT1}, s{sT1}, 1")
    o(f"s_add_u32 s{sT0}, s{sT0}, s{sT1}")
    o(f"v_lshl_add_u32 v{t0}, v{t1}, 2, s{sT0}")
    o(f"v_lshlrev_b32 v{t0}, 13, v{t0}")
    o(f"s_lshl_b32 s{sT1}, s{sHead}, 8")
    o(f"v_add3_u32 v{vDW}, v{t0}, v{t2}, s{sT1}")
    o(f"v_add_u32 v{vDW+1}, {8192-1088}, v{vDW}")
    o(f"s_lshl_b32 s{sT0}, s{sHead}, 19")
    o(f"s_add_u32 s{sT0}, s{sT0}, {1536*256}")
    o(f"s_lshl_b32 s{sT1}, s{sWave}, 10")
    o(f"s_add_u32 s{sT1}, s{sT1}, s{sT0}")
    o(f"v_lshlrev_b32 v{t0}, 12, v{t1}")
    o(f"v_add3_u32 v{vDK}, v{t0}, v{t2}, s{sT1}")
    for e in range(1, 4): o(f"v_subrev_u32 v{vDK+e}, {e*(1040-256)}, v{vDK}")
    o(f"s_lshl_b32 s{sT1}, s{sWave}, 12")
    o(f"s_add_u32 s{sT1}, s{sT1}, s{sT0}")
    o(f"v_lshlrev_b32 v{t0}, 10, v{t1}")
    o(f"v_add3_u32 v{vDV}, v{t0}, v{t2}, s{sT1}")
    for e in range(1, 4): o(f"v_subrev_u32 v{vDV+e}, {e*(1088-256)}, v{vDV}")
    o(f"v_lshrrev_b32 v{t0}, 2, v{L}")
    o(f"v_and_b32 v{t3}, 3, v{L}")
    o(f"v_bfe_u32 v{t4}, v{L}, 1, 3")
    o(f"v_and_b32 v{vTmp+5}, 1, v{L}")
    o(f"v_add_u32 v{vTmp+5}, 4, v{vTmp+5}")
    o(f"v_cmp_gt_u32 vcc, 32, v{L}")
    o("s_nop 1")
    o(f"v_cndmask_b32 v{t3}, v{vTmp+5}, v{t3}, vcc")
    o(f"v_cndmask_b32 v{vDG}, v{t4}, v{t0}, vcc")
    o(f"v_xor_b32 v{t4}, 4, v{t4}")
    o(f"v_cndmask_b32 v{vDU}, v{t4}, v{t0}, vcc")
    o(f"s_lshl_b32 s{sT0}, s{sWave}, 3")
    o(f"s_mul_i32 s{sT0}, s{sT0}, 2752")
    o(f"s_lshl_b32 s{sT1}, s{sFc}, 5")
    o(f"s_add_u32 s{sT0}, s{sT0}, s{sT1}")
    o(f"v_lshl_add_u32 v{t3}, v{t3}, 4, s{sT0}")
    o(f"s_movk_i32 s{sT1}, 2752")
    o(f"v_mad_u32_u24 v{vDG}, v{vDG}, s{sT1}, v{t3}")
    o(f"v_mad_u32_u24 v{vDU}, v{vDU}, s{sT1}, v{t3}")
    o(f"v_mov_b32 v{t0}, 0x40000000")
    o(f"v_cmp_gt_u32 vcc, 48, v{L}")
    o("s_nop 1")
    o(f"v_cndmask_b32 v{vDG}, v{t0}, v{vDG}, vcc")
    o(f"v_cndmask_b32 v{vDU}, v{t0}, v{vDU}, vcc")
    o("s_waitcnt lgkmcnt(0)")
    srd(o, sX, sP+12, 2097152, WS_XN)
    srd(o, sWQ, sP+6, 4194304)
    srd(o, sG, sP+8, 512*2752 + 2176, -2176)
    srd(o, sU, sP+10, 512*2752 + 3200, -3200)
    o(f"s_mul_i32 s{sM0a}, s{sWave}, 4160")
    o(f"s_mul_i32 s{sM0b}, s{sWave}, 4224")
    o(f"s_add_u32 s{sM0b}, s{sM0b}, {WREG}")
    o(f"s_mov_b32 s{sOffX}, 0"); o(f"s_mov_b32 s{sOffW}, 0"); o(f"s_mov_b32 s{sOffG}, 0")
    o(f"s_mov_b32 s{sDslot}, 0")
    o(f"s_mov_b32 s{sSlotP}, {SLOT}"); o(f"s_mov_b32 s{sSlotN}, {(-(NS-1)*SLOT) & 0xffffffff}")
    def dma_gemm():
        it = []
        it.append([f"s_mov_b32 m0, s{sM0a}", f"s_nop 0", f"buffer_load_dwordx4 v{vDX}, s[{sX}:{sX+3}], s{sOffX} offen lds"])
        for i in range(1, 4):
            it.append([f"buffer_load_dwordx4 v{vDX+i}, s[{sX}:{sX+3}], s{sOffX} offen offset:{i*1040} lds"])
        it.append([f"s_mov_b32 m0, s{sM0b}", f"s_add_u32 s{sOffX}, s{sOffX}, 64", f"buffer_load_dwordx4 v{vDW}, s[{sWQ}:{sWQ+3}], s{sOffW} offen lds"])
        it.append([f"buffer_load_dwordx4 v{vDW+1}, s[{sWQ}:{sWQ+3}], s{sOffW} offen offset:1088 lds", f"s_add_u32 s{sOffW}, s{sOffW}, {32*8192}"])
        it.append([f"buffer_load_dwordx4 v{vDG}, s[{sG}:{sG+3}], s{sOffG} offen offset:2176 lds"])
        it.append([f"buffer_load_dwordx4 v{vDU}, s[{sU}:{sU+3}], s{sOffG} offen offset:3200 lds", f"s_add_u32 s{sOffG}, s{sOffG}, {32*2752}"] + adv_dslot())
        return it
    def adv_dslot():
        return [f"s_add_u32 s{sDslot}, s{sDslot}, 1", f"s_and_b32 s{sDslot}, s{sDslot}, 3",
                f"s_cmp_eq_u32 s{sDslot}, 0", f"s_cselect_b32 s{sT0}, s{sSlotN}, s{sSlotP}",
                f"s_add_u32 s{sM0a}, s{sM0a}, s{sT0}", f"s_add_u32 s{sM0b}, s{sM0b}, s{sT0}"]
    def dma_attn():
        it = []
        it.append([f"s_mov_b32 m0, s{sM0a}", f"s_nop 0", f"buffer_load_dwordx4 v{vDK}, s[{sK}:{sK+3}], s{sOffKV} offen lds"])
        for i in range(1, 4):
            it.append([f"buffer_load_dwordx4 v{vDK+i}, s[{sK}:{sK+3}], s{sOffKV} offen offset:{i*1040} lds"])
        it.append([f"s_add_u32 m0, s{sM0b}, s{sW128}", f"s_nop 0", f"buffer_load_dwordx4 v{vDV}, s[{sV}:{sV+3}], s{sOffKV} offen lds"])
        for i in range(1, 4):
            it.append([f"buffer_load_dwordx4 v{vDV+i}, s[{sV}:{sV+3}], s{sOffKV} offen offset:{i*1088} lds"])
        it[-1] = it[-1] + [f"s_add_u32 s{sOffKV}, s{sOffKV}, 16384", f"s_cmp_ge_u32 s{sOffKV}, {8*16384}",
                           f"s_cselect_b32 s{sOffKV}, 0x40000000, s{sOffKV}"] + adv_dslot()
        return it
    for st in range(NS):
        for it in dma_gemm(): o(it)
    srd(o, sK, sP+2, 16777216)
    srd(o, sV, sP+4, 16777216)
    srd(o, sO, sP+12, 16777216, WS_O)
    srd(o, sH, sP+12, 64*86*1024, WS_H)
    o(f"s_lshl_b32 s{sW128}, s{sWave}, 7")
    o(f"s_mov_b32 s{sOffKV}, 0")
    o(f"s_mov_b32 s{sThr}, {f32(65536.0)}")
    n_, hf_, r_, c_, g16_ = t0, t1, t2, t3, t4
    o(f"v_and_b32 v{n_}, 31, v{L}")
    o(f"v_lshrrev_b32 v{hf_}, 5, v{L}")
    o(f"v_bfe_u32 v{r_}, v{L}, 2, 2")
    o(f"v_and_b32 v{c_}, 3, v{L}")
    o(f"v_bfe_u32 v{g16_}, v{L}, 4, 1")
    x0, x1 = vTmp+5, vTmp+6
    o(f"s_movk_i32 s{sT0}, 1040")
    o(f"v_mul_u32_u24 v{x0}, s{sT0}, v{r_}")
    o(f"v_lshl_add_u32 v{x1}, v{g16_}, 2, v{c_}")
    o(f"v_lshl_add_u32 v{x0}, v{x1}, 6, v{x0}")
    o(f"v_lshl_add_u32 v{x0}, v{hf_}, 4, v{x0}")
    o(f"s_mul_i32 s{sT1}, s{sWave}, 4160")
    o(f"v_add_u32 v{vAX}, s{sT1}, v{x0}")
    gc = vTmp+7
    o(f"v_lshlrev_b32 v{gc}, 5, v{g16_}")
    o(f"v_lshl_add_u32 v{gc}, v{c_}, 3, v{gc}")
    o(f"v_and_b32 v{x0}, 1, v{c_}")
    o(f"v_lshlrev_b32 v{x0}, 1, v{x0}")
    o(f"v_lshrrev_b32 v{x1}, 1, v{c_}")
    o(f"v_or_b32 v{x0}, v{x0}, v{x1}")
    o(f"v_lshlrev_b32 v{x0}, 3, v{x0}")
    o(f"v_lshl_add_u32 v{x0}, v{g16_}, 5, v{x0}")
    o(f"v_lshl_add_u32 v{x0}, v{hf_}, 9, v{x0}")
    o(f"v_lshrrev_b32 v{x1}, 1, v{r_}")
    o(f"s_movk_i32 s{sT0}, 4224")
    o(f"v_mad_u32_u24 v{x0}, v{x1}, s{sT0}, v{x0}")
    o(f"v_and_b32 v{x1}, 1, v{r_}")
    o(f"s_movk_i32 s{sT1}, 1088")
    o(f"v_mad_u32_u24 v{x0}, v{x1}, s{sT1}, v{x0}")
    o(f"v_add_u32 v{vAW}, {WREG}, v{x0}")
    o(f"v_mad_u32_u24 v{x0}, v{hf_}, s{sT0}, v{gc}")
    o(f"v_lshl_add_u32 v{x0}, v{r_}, 6, v{x0}")
    o(f"v_add_u32 v{vAG}, {WREG+2176}, v{x0}")
    o(f"v_lshlrev_b32 v{x0}, 3, v{c_}")
    o(f"v_lshl_add_u32 v{x0}, v{r_}, 5, v{x0}")
    o(f"v_mad_u32_u24 v{x0}, v{hf_}, s{sT0}, v{x0}")
    o(f"v_lshl_add_u32 v{x0}, v{g16_}, 10, v{x0}")
    o(f"v_add_u32 v{x0}, {WREG+2176+512}, v{x0}")
    o(f"v_lshl_add_u32 v{vA6}, v{g16_}, 7, v{x0}")
    o(f"v_xor_b32 v{x1}, 1, v{g16_}")
    o(f"v_lshl_add_u32 v{vA6+1}, v{x1}, 7, v{x0}")
    o(f"v_and_b32 v{x0}, 15, v{L}")
    o(f"s_movk_i32 s{sT2}, 1040")
    o(f"v_mul_u32_u24 v{x0}, s{sT2}, v{x0}")
    o(f"v_lshl_add_u32 v{x0}, v{g16_}, 8, v{x0}")
    o(f"v_lshl_add_u32 v{vAK}, v{hf_}, 4, v{x0}")
    o(f"v_mad_u32_u24 v{x0}, v{r_}, s{sT1}, v{gc}")
    o(f"v_lshl_add_u32 v{x0}, v{hf_}, 8, v{x0}")
    o(f"v_add_u32 v{vAV}, {WREG}, v{x0}")
    o(f"v_lshlrev_b32 v{vSt}, 4, v{L}")
    for i in range(128): o(f"v_accvgpr_write_b32 a{i}, 0")
    for t in range(3):
        for nt in range(2):
            for i in range(16): o(f"v_mov_b32 v{vGU[t][nt]+i}, 0")
    o(f"s_mov_b32 s{sRslot}, 0")

    def frag_reads(st, s_):
        it = []
        for nt in range(2):
            it.append(f"ds_read_b128 v[{vB[st][nt]}:{vB[st][nt]+3}], v{vAX} offset:{nt*512 + s_*32}")
        for T in range(4):
            for q in range(2):
                it.append(f"ds_read_b64_tr_b16 v[{vA[st][T]+2*q}:{vA[st][T]+2*q+1}], v{vAW} offset:{s_*8448 + q*256 + T*64}")
        for T in range(2):
            for q in range(2):
                it.append(f"ds_read_b64_tr_b16 v[{vA[st][4+T]+2*q}:{vA[st][4+T]+2*q+1}], v{vAG} offset:{s_*8448 + q*256 + T*1024}")
        for q in range(2):
            it.append(f"ds_read_b64_tr_b16 v[{vA[st][6]+2*q}:{vA[st][6]+2*q+1}], v{vA6+q} offset:{s_*8448}")
        return it
    def gemm_mfmas(st):
        m = []
        for T in range(7):
            for nt in range(2):
                if T < 4:
                    d = a(aQ[T][nt], 16)
                else:
                    d = v(vGU[T-4][nt], 16)
                m.append(f"v_mfma_f32_32x32x16_bf16 {d}, {v(vA[st][T],4)}, {v(vB[st][nt],4)}, {d}")
        return m
    def bump_read(regs):
        pre = [f"s_add_u32 s{sRslot}, s{sRslot}, 1", f"s_and_b32 s{sRslot}, s{sRslot}, 3",
               f"s_cmp_eq_u32 s{sRslot}, 0", f"s_cselect_b32 s{sDelta}, s{sSlotN}, s{sSlotP}"]
        return pre, [f"v_add_u32 v{r}, s{sDelta}, v{r}" for r in regs]

    o(f"s_waitcnt vmcnt({8*(NS-1)})")
    o("s_barrier")
    for x in frag_reads(0, 0): o(x)
    stamp()
    def gemm_stage(dma, last):
        m = gemm_mfmas(0); gaps = [[] for _ in m]
        spread(gaps, frag_reads(1, 1), 0, 10)
        pre, bump = bump_read([vAX, vAW, vAG, vA6, vA6+1])
        gaps[10].extend(pre)
        o("s_waitcnt lgkmcnt(0)")
        interleave(o, m, gaps)
        m = gemm_mfmas(1); gaps = [[] for _ in m]
        o("s_waitcnt lgkmcnt(0)")
        o(m[0])
        for x in bump: o(x)
        o(f"s_waitcnt vmcnt({8*(NS-2)})")
        o("s_barrier")
        m = m[1:]; gaps = gaps[1:]
        if not last:
            spread(gaps, frag_reads(0, 0), 0, 8)
        if dma is not None:
            spread(gaps, dma(), 4, 13)
        interleave(o, m, gaps)
    o(f"s_mov_b32 s{sCnt}, 0")
    o.label("L_g1")
    gemm_stage(dma_gemm, False)
    o(f"s_add_u32 s{sCnt}, s{sCnt}, 1"); o(f"s_cmp_lt_u32 s{sCnt}, 12"); o("s_cbranch_scc1 L_g1")
    o.label("L_g2")
    gemm_stage(dma_attn, False)
    o(f"s_add_u32 s{sCnt}, s{sCnt}, 1"); o(f"s_cmp_lt_u32 s{sCnt}, 15"); o("s_cbranch_scc1 L_g2")
    gemm_stage(None, True)
    stamp()
    o("s_nop 7"); o("s_nop 7")
    o(f"s_lshl_b32 s{sT0}, s{sRb}, 3")
    o(f"s_lshl_b32 s{sT1}, s{sWave}, 1")
    o(f"s_add_u32 s{sT0}, s{sT0}, s{sT1}")
    o(f"s_mul_i32 s{sT1}, s{sT0}, 86")
    o(f"s_add_u32 s{sT1}, s{sT1}, s{sFc}")
    o(f"s_lshl_b32 s{sT1}, s{sT1}, 10")
    o(f"s_add_u32 s{sT2}, s{sT1}, {86*1024}")
    hb = vA[0][0]
    def hcalc(g, u, tmp):
        return [f"v_mul_f32 v{tmp}, {f32(-LOG2E)}, v{g}", f"v_exp_f32 v{tmp}, v{tmp}", None,
                f"v_add_f32 v{tmp}, 1.0, v{tmp}", f"v_rcp_f32 v{tmp}, v{tmp}", None, f"v_mul_f32 v{tmp}, v{tmp}, v{u}"]
    grp = 0
    for nt in range(2):
        for fs in range(3):
            if fs < 2: gs_, us_ = vGU[0][nt] + 8*fs, vGU[1][nt] + 8*fs
            else:      gs_, us_ = vGU[2][nt], vGU[2][nt] + 8
            tb = vA[0][0] + (grp % 2) * 12
            pk = tb + 8
            seqs = [hcalc(gs_+i, us_+i, tb+i) for i in range(8)]
            for step in range(7):
                for i in range(8):
                    if seqs[i][step]: o(seqs[i][step])
            for i in range(4): o(f"v_cvt_pk_bf16_f32 v{pk+i}, v{tb+2*i}, v{tb+2*i+1}")
            o(f"buffer_store_dwordx4 v[{pk}:{pk+3}], v{vSt}, s[{sH}:{sH+3}], s{sT1+nt} offen offset:{fs*1024}")
            grp += 1
    V.reset(mark)
    aQF = [[128 + (nt*8 + t)*4 for t in range(8)] for nt in range(2)]
    aKF = [192 + 4*t for t in range(8)]
    aVF = [[224 + (T*2+tt)*4 for tt in range(2)] for T in range(4)]
    vS = [[V.alloc(f"S{b}{nt}", 16, 4) for nt in range(2)] for b in range(2)]
    vP = [[V.alloc(f"P{b}{nt}", 8, 4) for nt in range(2)] for b in range(2)]
    vNM = [V.alloc(f"NM{nt}", 16, 4) for nt in range(2)]
    vE = V.alloc("E", 8)
    vTs = V.alloc("ts", 2); vL = V.alloc("l", 2); vChk = V.alloc("chk")
    vQT = V.alloc("QT", 16, 4)
    def kreads(jj):
        return [f"ds_read_b128 a[{aKF[t]}:{aKF[t]+3}], v{vAK} offset:{jj*512 + t*32}" for t in range(8)]
    def vreads(jj):
        it = []
        for tt in range(2):
            for T in range(4):
                for q in range(2):
                    it.append(f"ds_read_b64_tr_b16 a[{aVF[T][tt]+2*q}:{aVF[T][tt]+2*q+1}], v{vAV} offset:{(2*jj+tt)*4352 + q*512 + T*64}")
        return it
    for x in kreads(0): o(x)
    qs = f32(LOG2E / math.sqrt(128.0))
    o(f"s_mov_b32 s{sT0}, {qs}")
    for T in range(4):
        for nt in range(2):
            for i in range(16): o(f"v_accvgpr_read_b32 v{vQT+i}, a{aQ[T][nt]+i}")
            for i in range(16): o(f"v_mul_f32 v{vQT+i}, s{sT0}, v{vQT+i}")
            for i in range(8): o(f"v_cvt_pk_bf16_f32 v{vQT+i}, v{vQT+2*i}, v{vQT+2*i+1}")
            for i in range(8): o(f"v_accvgpr_write_b32 a{aQF[nt][2*T]+i}, v{vQT+i}")
            if OPT["dumpq"]:
                pass
    aO = [[(T * 2 + nt) * 16 for nt in range(2)] for T in range(4)]
    stamp()
    def qk(b, first=False):
        m = []
        for t in range(8):
            for nt in range(2):
                c = v(vS[b][nt], 16) if t > 0 else ("0" if first else v(vNM[nt], 16))
                m.append(f"v_mfma_f32_32x32x16_bf16 {v(vS[b][nt],16)}, {a(aKF[t],4)}, {a(aQF[nt][t],4)}, {c}")
        return m
    def pv(b, first=False):
        m = []
        for tt in range(2):
            for T in range(4):
                for nt in range(2):
                    c = "0" if (first and tt == 0) else a(aO[T][nt], 16)
                    m.append(f"v_mfma_f32_32x32x16_bf16 {a(aO[T][nt],16)}, {a(aVF[T][tt],4)}, {v(vP[b][nt]+4*tt,4)}, {c}")
        return m
    def softmax(b, nt):
        items = [[] for _ in range(16)]
        for r in range(16):
            items[r].append(f"v_exp_f32 v{vE + r % 8}, v{vS[b][nt]+r}")
            if r >= 2 and r % 2 == 0:
                p = r - 2
                if p == 0: items[r].append(f"v_add_f32 v{vTs+nt}, v{vE+0}, v{vE+1}")
                else:
                    items[r].append(f"v_add_f32 v{vTs+nt}, v{vTs+nt}, v{vE + p % 8}")
                items[r].append(f"v_cvt_pk_bf16_f32 v{vP[b][nt] + p//2}, v{vE + p % 8}, v{vE + (p+1) % 8}")
            if r >= 3 and r % 2 == 1 and r - 2 > 1:
                items[r].append(f"v_add_f32 v{vTs+nt}, v{vTs+nt}, v{vE + (r-2) % 8}")
        tail = [f"v_add_f32 v{vTs+nt}, v{vTs+nt}, v{vE + 14 % 8}",
                f"v_cvt_pk_bf16_f32 v{vP[b][nt] + 7}, v{vE + 14 % 8}, v{vE + 15 % 8}",
                f"v_add_f32 v{vTs+nt}, v{vTs+nt}, v{vE + 15 % 8}"]
        return items, tail
    fallbacks = []
    def check(b, has_next, tag):
        o(f"v_add_f32 v{vChk}, v{vTs}, v{vTs+1}")
        o(f"v_cmp_nle_f32 vcc, v{vChk}, s{sThr}")
        o("s_nop 1")
        o(f"s_cbranch_vccnz L_fb_{tag}")
        o.label(f"L_ret_{tag}")
        o(f"v_add_f32 v{vL}, v{vL}, v{vTs}")
        o(f"v_add_f32 v{vL+1}, v{vL+1}, v{vTs+1}")
        fallbacks.append((b, has_next, tag))
    def rowmax(b, nt, dst, tmp):
        s_ = vS[b][nt]
        o(f"v_max3_f32 v{dst}, v{s_}, v{s_+1}, v{s_+2}")
        for i in range(3, 15, 2): o(f"v_max3_f32 v{dst}, v{dst}, v{s_+i}, v{s_+i+1}")
        o(f"v_max_f32 v{dst}, v{dst}, v{s_+15}")
        o(f"v_mov_b32 v{tmp}, v{dst}")
        o("s_nop 1")
        o(f"v_permlane32_swap_b32 v{tmp}, v{dst}")
        o("s_nop 1")
        o(f"v_max_f32 v{dst}, v{dst}, v{tmp}")
    o("s_waitcnt lgkmcnt(0)")
    o("s_nop 1")
    for x in qk(0, first=True): o(x)
    for x in kreads(1): o(x)
    o("s_nop 7"); o("s_nop 7")
    for nt in range(2):
        rowmax(0, nt, vE, vE+1)
        for i in range(16): o(f"v_sub_f32 v{vS[0][nt]+i}, v{vS[0][nt]+i}, v{vE}")
        for i in range(16): o(f"v_sub_f32 v{vNM[nt]+i}, 0, v{vE}")
    o(f"v_mov_b32 v{vL}, 0"); o(f"v_mov_b32 v{vL+1}, 0")
    o("s_waitcnt lgkmcnt(0)")
    m = qk(1); gaps = [[] for _ in m]
    i0, tl0 = softmax(0, 0); i1, tl1 = softmax(0, 1)
    spread(gaps, i0 + [tl0] + i1 + [tl1], 0, 16)
    spread(gaps, vreads(0), 0, 8)
    interleave(o, m, gaps)
    check(0, True, "p0")
    def blockX(j_par, jj_k, first=False, dma=None, bar=False, kread=True):
        b = j_par
        m = pv(1 - b, first); gaps = [[] for _ in m]
        o("s_waitcnt lgkmcnt(0)")
        it, tl = softmax(b, 0)
        if bar:
            pre, bump = bump_read([vAK])
            o(m[0])
            for x in pre + bump: o(x)
            o("s_waitcnt vmcnt(8)")
            o("s_barrier")
            m = m[1:]; gaps = gaps[1:]
            spread(gaps, it + [tl], 1, 15)
            spread(gaps, kreads(jj_k), 0, 8)
            spread(gaps, dma(), 6, 15)
        else:
            spread(gaps, it + [tl], 2, 16)
            if kread: spread(gaps, kreads(jj_k), 0, 8)
        interleave(o, m, gaps)
    def blockY(j_par, jj_v, bumpv=False, hasqk=True):
        b = j_par
        it, tl = softmax(b, 1)
        if hasqk:
            m = qk(1 - b); gaps = [[] for _ in m]
            o("s_waitcnt lgkmcnt(0)")
            spread(gaps, vreads(jj_v), 0, 8)
            spread(gaps, it + [tl], 0, 16)
            if bumpv:
                gaps[9].append(f"v_add_u32 v{vAV}, s{sDelta}, v{vAV}")
            interleave(o, m, gaps)
        else:
            for x in vreads(jj_v): o(x)
            for x in it: o(x)
            o(tl)
    stamp()
    for i in range(128): o(f"v_accvgpr_write_b32 a{i}, 0")
    o(f"s_mov_b32 s{sCnt}, 0")
    o.label("L_att")
    blockX(1, 0, dma=dma_attn, bar=True)
    blockY(1, 1, bumpv=True)
    check(1, True, "b1")
    blockX(0, 1)
    blockY(0, 0)
    check(0, True, "b0")
    o(f"s_add_u32 s{sCnt}, s{sCnt}, 1"); o(f"s_cmp_lt_u32 s{sCnt}, 7"); o("s_cbranch_scc1 L_att")
    blockX(1, 0, kread=False)
    blockY(1, 1, hasqk=False)
    check(1, False, "t1")
    o("s_waitcnt lgkmcnt(0)")
    for x in pv(1): o(x)
    stamp()
    for nt in range(2):
        o(f"v_mov_b32 v{vE}, v{vL+nt}")
        o("s_nop 1")
        o(f"v_permlane32_swap_b32 v{vE}, v{vL+nt}")
        o("s_nop 1")
        o(f"v_add_f32 v{vL+nt}, v{vL+nt}, v{vE}")
        o(f"v_rcp_f32 v{vL+nt}, v{vL+nt}")
    o(f"s_lshl_b32 s{sT0}, s{sRb}, 3")
    o(f"s_lshl_b32 s{sT1}, s{sWave}, 1")
    o(f"s_add_u32 s{sT0}, s{sT0}, s{sT1}")
    o(f"s_lshl_b32 s{sT0}, s{sT0}, 18")
    o(f"s_lshl_b32 s{sT1}, s{sHead}, 13")
    o(f"s_add_u32 s{sT1}, s{sT0}, s{sT1}")
    o(f"s_add_u32 s{sT2}, s{sT1}, {256*1024}")
    o(f"s_add_u32 s{sT0}, s{sT1}, 4096")
    o(f"s_add_u32 s{sT3}, s{sT2}, 4096")
    o("s_nop 7")
    k = 0
    for nt in range(2):
        for T in range(4):
            tb = vS[k % 2][0]; k += 1
            for i in range(16): o(f"v_accvgpr_read_b32 v{tb+i}, a{aO[T][nt]+i}")
            for i in range(16): o(f"v_mul_f32 v{tb+i}, v{tb+i}, v{vL+nt}")
            pk = tb + 16
            for i in range(8): o(f"v_cvt_pk_bf16_f32 v{pk+i}, v{tb+2*i}, v{tb+2*i+1}")
            so = [[sT1, sT0], [sT2, sT3]][nt][T // 2]
            for tp in range(2):
                o(f"buffer_store_dwordx4 v[{pk+4*tp}:{pk+4*tp+3}], v{vSt}, s[{sO}:{sO+3}], s{so} offen offset:{((2*T+tp) % 4)*1024}")
    stamp()
    if OPT["stamps"]:
        o("s_waitcnt vmcnt(0) lgkmcnt(0)")
        stamp()
        o("s_waitcnt lgkmcnt(0)")
        srd(o, sX, sP+12, 0x100000, WS_DBG)
        o(f"s_lshl_b32 s{sT0}, s2, 2"); o(f"s_add_u32 s{sT0}, s{sT0}, s{sWave}"); o(f"s_lshl_b32 s{sT0}, s{sT0}, 6")
        for i in range(nstamp[0]):
            o(f"s_sub_u32 s{sT1}, s{sStamp+2*i}, s{sStamp}")
            o(f"v_mov_b32 v{vE}, s{sT1}")
            o(f"v_mov_b32 v{vE+1}, 0")
            o(f"buffer_store_dword v{vE}, v{vE+1}, s[{sX}:{sX+3}], s{sT0} offen offset:{4*i}")
    o.label("L_k1_end")
    o("s_endpgm")
    for (b, has_next, tag) in fallbacks:
        o.label(f"L_fb_{tag}")
        o("s_nop 7"); o("s_nop 7"); o("s_nop 7")
        for nt in range(2):
            d, f = vE, vE + 1
            rowmax(b, nt, d, f)
            o(f"v_max_f32 v{d}, 0, v{d}")
            o(f"v_sub_f32 v{f}, 0, v{d}")
            o(f"v_exp_f32 v{f}, v{f}")
            for i in range(16): o(f"v_sub_f32 v{vNM[nt]+i}, v{vNM[nt]+i}, v{d}")
            for i in range(16): o(f"v_sub_f32 v{vS[b][nt]+i}, v{vS[b][nt]+i}, v{d}")
            if has_next:
                for i in range(16): o(f"v_sub_f32 v{vS[1-b][nt]+i}, v{vS[1-b][nt]+i}, v{d}")
            o(f"v_mul_f32 v{vL+nt}, v{vL+nt}, v{f}")
            if tag != "p0":
                for T in range(4):
                    for i in range(16): o(f"v_accvgpr_read_b32 v{vQT+i}, a{aO[T][nt]+i}")
                    for i in range(16): o(f"v_mul_f32 v{vQT+i}, v{vQT+i}, v{f}")
                    for i in range(16): o(f"v_accvgpr_write_b32 a{aO[T][nt]+i}, v{vQT+i}")
            for i in range(16): o(f"v_exp_f32 v{vQT+i}, v{vS[b][nt]+i}")
            o("s_nop 0")
            o(f"v_add_f32 v{vTs+nt}, v{vQT}, v{vQT+1}")
            for i in range(2, 16): o(f"v_add_f32 v{vTs+nt}, v{vTs+nt}, v{vQT+i}")
            for i in range(8): o(f"v_cvt_pk_bf16_f32 v{vP[b][nt]+i}, v{vQT+2*i}, v{vQT+2*i+1}")
        o("s_nop 1")
        o(f"s_branch L_ret_{tag}")
    kernel_desc(o, name, 512, 256, 102)

def gen_k2(o):
    name = "proj_kernel"
    kernel_header(o, name)
    D = 6
    WST = 4352
    sA0, sA1, sW, sXo, sOut = 4, 8, 12, 16, 20
    sWave, sRt2, sCt = 24, 25, 26
    sT0, sT1, sT2, sT3 = 28, 29, 30, 31
    sOffA, sOffW, sM0, sCnt = 32, 33, 34, 35
    sP = 40
    V = RegAlloc(1, 256, "v")
    vLane = V.alloc("lane"); vTmp = V.alloc("tmp", 8)
    vAW = V.alloc("AW"); vDW = V.alloc("DW", 4); vDA = V.alloc("DA"); vXo = V.alloc("Xo"); vEx = V.alloc("Ex")
    vAct = [[[V.alloc(f"act{d}{nt}{tt}", 4, 4) for tt in range(2)] for nt in range(2)] for d in range(D)]
    vW = [[[V.alloc(f"w{p}{T}{tt}", 4, 4) for tt in range(2)] for T in range(2)] for p in range(2)]
    vAcc = [[V.alloc(f"acc{T}{nt}", 16, 4) for nt in range(2)] for T in range(2)]
    vX = V.alloc("x", 8, 4)
    o("s_cmp_ge_u32 s2, 256"); o("s_cbranch_scc1 L_k2_end")
    o(f"s_load_dwordx2 s[{sP}:{sP+1}], s[0:1], 0")
    o(f"s_load_dwordx2 s[{sP+2}:{sP+3}], s[0:1], 32")
    o(f"s_load_dwordx4 s[{sP+4}:{sP+7}], s[0:1], 64")
    o(f"s_load_dwordx2 s[{sP+8}:{sP+9}], s[0:1], 88")
    L = vLane; t0, t1, t2, t3, t4 = vTmp, vTmp+1, vTmp+2, vTmp+3, vTmp+4
    o(f"v_and_b32 v{L}, 63, v0")
    o(f"v_lshrrev_b32 v{t0}, 6, v0")
    o("s_and_b32 s3, s2, 7")
    o(f"v_readfirstlane_b32 s{sWave}, v{t0}")
    o("s_lshl_b32 s3, s3, 2")
    o(f"s_bfe_u32 s{sT0}, s2, 0x20003")
    o(f"s_add_u32 s{sRt2}, s3, s{sT0}")
    o(f"s_lshr_b32 s{sCt}, s2, 5")
    o(f"v_lshrrev_b32 v{t0}, 3, v{L}")
    o(f"v_lshlrev_b32 v{t0}, 12, v{t0}")
    o(f"v_and_b32 v{t1}, 7, v{L}")
    o(f"v_lshl_add_u32 v{t0}, v{t1}, 4, v{t0}")
    o(f"s_lshl_b32 s{sT0}, s{sCt}, 7")
    o(f"s_add_u32 s{sT0}, s{sT0}, 256")
    o(f"v_add_u32 v{vDW}, s{sT0}, v{t0}")
    for i in range(1, 4): o(f"v_subrev_u32 v{vDW+i}, {i*64}, v{vDW}")
    o(f"v_lshlrev_b32 v{vDA}, 4, v{L}")
    o("s_waitcnt lgkmcnt(0)")
    o(f"s_lshl_b32 s{sT0}, s{sRt2}, 1")
    o(f"s_mov_b32 s{sT1}, 86")
    o(f"s_mov_b32 s{sCnt}, {WS_H}")
    o(f"s_mul_i32 s{sT3}, s{sWave}, 86")
    o(f"s_cmp_lt_u32 s{sWave}, 3")
    o(f"s_cmov_b32 s{sT1}, 256")
    o(f"s_cselect_b32 s{sT3}, s{sT3}, 0")
    o(f"s_cmov_b32 s{sCnt}, {WS_O}")
    o(f"s_mul_i32 s{sT2}, s{sT0}, s{sT1}")
    o(f"s_add_u32 s{sT2}, s{sT2}, s{sT3}")
    o(f"s_lshl_b32 s{sT2}, s{sT2}, 10")
    o(f"s_add_u32 s{sT2}, s{sT2}, s{sCnt}")
    o(f"s_add_u32 s{sA0}, s{sP+8}, s{sT2}")
    o(f"s_addc_u32 s{sA0+1}, s{sP+9}, 0")
    o(f"s_lshl_b32 s{sT1}, s{sT1}, 10")
    o(f"s_add_u32 s{sA1}, s{sA0}, s{sT1}")
    o(f"s_addc_u32 s{sA1+1}, s{sA0+1}, 0")
    o(f"s_mov_b32 s{sA0+2}, {86*1024}")
    o(f"s_cmp_eq_u32 s{sWave}, 2")
    o(f"s_cmov_b32 s{sA0+2}, {84*1024}")
    o(f"s_mov_b32 s{sA1+2}, s{sA0+2}")
    o(f"s_mov_b32 s{sA0+3}, 0x00020000"); o(f"s_mov_b32 s{sA1+3}, 0x00020000")
    o(f"s_mov_b32 s{sW+2}, {1376*1024+256}")
    o(f"s_mul_i32 s{sT2}, s{sWave}, {1376*1024}")
    o(f"s_cmp_lt_u32 s{sWave}, 3")
    o(f"s_cselect_b32 s{sT0}, s{sP+2}, s{sP+4}")
    o(f"s_cselect_b32 s{sT1}, s{sP+3}, s{sP+5}")
    o(f"s_cmov_b32 s{sW+2}, {4096*1024+256}")
    o(f"s_cselect_b32 s{sOffW}, s{sT2}, 0")
    o(f"s_sub_u32 s{sW}, s{sT0}, 256")
    o(f"s_subb_u32 s{sW+1}, s{sT1}, 0")
    o(f"s_mov_b32 s{sW+3}, 0x00020000")
    o(f"s_mov_b32 s{sOffA}, 0")
    o(f"s_mul_i32 s{sM0}, s{sWave}, {D*WST}")
    def loads(d):
        it = []
        it.append([f"s_add_u32 m0, s{sM0}, {d*WST}",
                   f"buffer_load_dwordx4 v[{vAct[d][0][0]}:{vAct[d][0][0]+3}], v{vDA}, s[{sA0}:{sA0+3}], s{sOffA} offen"])
        it.append([f"buffer_load_dwordx4 v{vDW}, s[{sW}:{sW+3}], s{sOffW} offen lds"])
        it.append([f"buffer_load_dwordx4 v[{vAct[d][1][0]}:{vAct[d][1][0]+3}], v{vDA}, s[{sA1}:{sA1+3}], s{sOffA} offen"])
        it.append([f"buffer_load_dwordx4 v{vDW+1}, s[{sW}:{sW+3}], s{sOffW} offen offset:1088 lds"])
        it.append([f"buffer_load_dwordx4 v[{vAct[d][0][1]}:{vAct[d][0][1]+3}], v{vDA}, s[{sA0}:{sA0+3}], s{sOffA} offen offset:1024"])
        it.append([f"buffer_load_dwordx4 v{vDW+2}, s[{sW}:{sW+3}], s{sOffW} offen offset:2176 lds"])
        it.append([f"buffer_load_dwordx4 v[{vAct[d][1][1]}:{vAct[d][1][1]+3}], v{vDA}, s[{sA1}:{sA1+3}], s{sOffA} offen offset:1024"])
        it.append([f"buffer_load_dwordx4 v{vDW+3}, s[{sW}:{sW+3}], s{sOffW} offen offset:3264 lds",
                   f"s_add_u32 s{sOffA}, s{sOffA}, 2048", f"s_add_u32 s{sOffW}, s{sOffW}, 32768"])
        return it
    for d in range(D):
        for it in loads(d): o(it)
    srd(o, sXo, sP, 2097152)
    srd(o, sOut, sP+6, 2097152)
    o(f"v_and_b32 v{t0}, 31, v{L}")
    o(f"v_lshrrev_b32 v{t1}, 5, v{L}")
    o(f"s_and_b32 s{sT0}, s{sWave}, 1"); o(f"s_lshl_b32 s{sT0}, s{sT0}, 5")
    o(f"s_lshl_b32 s{sT1}, s{sRt2}, 6"); o(f"s_add_u32 s{sT0}, s{sT0}, s{sT1}")
    o(f"v_add_u32 v{t0}, s{sT0}, v{t0}")
    o(f"v_lshlrev_b32 v{t0}, 10, v{t0}")
    o(f"v_lshl_add_u32 v{t0}, v{t1}, 3, v{t0}")
    o(f"s_lshr_b32 s{sT0}, s{sWave}, 1"); o(f"s_lshl_b32 s{sT0}, s{sT0}, 6")
    o(f"s_lshl_b32 s{sT1}, s{sCt}, 7"); o(f"s_add_u32 s{sT0}, s{sT0}, s{sT1}")
    o(f"v_add_u32 v{vXo}, s{sT0}, v{t0}")
    o(f"v_bfe_u32 v{t2}, v{L}, 2, 2")
    o(f"s_movk_i32 s{sT0}, 1088")
    o(f"v_mul_u32_u24 v{t2}, s{sT0}, v{t2}")
    o(f"v_lshl_add_u32 v{t2}, v{t1}, 7, v{t2}")
    o(f"v_bfe_u32 v{t3}, v{L}, 4, 1")
    o(f"v_lshl_add_u32 v{t2}, v{t3}, 5, v{t2}")
    o(f"v_and_b32 v{t3}, 3, v{L}")
    o(f"v_lshl_add_u32 v{t2}, v{t3}, 3, v{t2}")
    o(f"v_add_u32 v{vAW}, s{sM0}, v{t2}")
    for T in range(2):
        for nt in range(2):
            for i in range(16): o(f"v_mov_b32 v{vAcc[T][nt]+i}, 0")
    def wreads(p, d):
        it = []
        for tt in range(2):
            for T in range(2):
                for q in range(2):
                    it.append(f"ds_read_b64_tr_b16 v[{vW[p][T][tt]+2*q}:{vW[p][T][tt]+2*q+1}], v{vAW} offset:{d*WST + (4*tt+2*q)*128 + T*64}")
        return it
    def mf(p, d):
        m = []
        for tt in range(2):
            for T in range(2):
                for nt in range(2):
                    m.append(f"v_mfma_f32_32x32x16_bf16 {v(vAcc[T][nt],16)}, {v(vW[p][T][tt],4)}, {v(vAct[d][nt][tt],4)}, {v(vAcc[T][nt],16)}")
        return m
    NST = 43
    o(f"s_waitcnt vmcnt({8*(D-1)})")
    for x in wreads(0, 0): o(x)
    def stage(i, d, nout_after, do_load, do_read):
        p = i % 2
        m = mf(p, d); gaps = [[] for _ in m]
        if do_read:
            o(f"s_waitcnt vmcnt({nout_after}) lgkmcnt(0)")
            spread(gaps, wreads(1 - p, (d + 1) % D), 0, 4)
        else:
            o("s_waitcnt lgkmcnt(0)")
        interleave(o, m, gaps)
        if do_load:
            for it in loads(d): o(it)
    o(f"s_mov_b32 s{sCnt}, 0")
    o.label("L_k2_loop")
    for d in range(D):
        stage(d, d, 8*(D-2), True, True)
    o(f"s_add_u32 s{sCnt}, s{sCnt}, 1"); o(f"s_cmp_lt_u32 s{sCnt}, 6"); o("s_cbranch_scc1 L_k2_loop")
    for g in range(4):
        o(f"buffer_load_dwordx2 v[{vX+2*g}:{vX+2*g+1}], v{vXo}, s[{sXo}:{sXo+3}], 0 offen offset:{g*16}")
    stage(36, 0, 8*(D-2)+4, True, True)
    for i in range(37, 43):
        rem = 42 - (i + 1)
        if i + 1 <= 41: nout = 8*rem + 4
        else: nout = 0
        stage(i, i % D, nout, False, i < 42)
    o("s_nop 7"); o("s_nop 7")
    o("s_barrier")
    o(f"s_lshl_b32 s{sT0}, s{sWave}, 14")
    o(f"v_add_u32 v{vEx}, s{sT0}, v{vDA}")
    for T in range(2):
        for nt in range(2):
            for j in range(4):
                o(f"ds_write_b128 v{vEx}, v[{vAcc[T][nt]+4*j}:{vAcc[T][nt]+4*j+3}] offset:{(T*2+nt)*4096 + j*1024}")
    o(f"s_lshl_b32 s{sT0}, s{sWave}, 12")
    o(f"v_add_u32 v{vEx}, s{sT0}, v{vDA}")
    o("s_waitcnt lgkmcnt(0)")
    o("s_barrier")
    R = vAct[0][0][0]
    for w in range(4):
        for j in range(4):
            o(f"ds_read_b128 v[{R+16*w+4*j}:{R+16*w+4*j+3}], v{vEx} offset:{w*16384 + j*1024}")
    o("s_waitcnt lgkmcnt(0) vmcnt(0)")
    E = R + 64
    for i in range(16): o(f"v_add_f32 v{R+i}, v{R+i}, v{R+16+i}")
    for i in range(16): o(f"v_mul_f32 v{E+i}, {f32(-LOG2E)}, v{R+48+i}")
    for i in range(16): o(f"v_exp_f32 v{E+i}, v{E+i}")
    for i in range(16): o(f"v_add_f32 v{R+i}, v{R+i}, v{R+32+i}")
    for i in range(16): o(f"v_add_f32 v{E+i}, 1.0, v{E+i}")
    for i in range(16): o(f"v_rcp_f32 v{E+i}, v{E+i}")
    for i in range(16): o(f"v_mul_f32 v{R+i}, v{R+i}, v{R+48+i}")
    for i in range(8):
        o(f"v_lshlrev_b32 v{R+16+2*i}, 16, v{vX+i}")
        o(f"v_and_b32 v{R+17+2*i}, 0xffff0000, v{vX+i}")
    for i in range(16): o(f"v_fmac_f32 v{R+16+i}, v{R+i}, v{E+i}")
    for i in range(8): o(f"v_cvt_pk_bf16_f32 v{vX+i}, v{R+16+2*i}, v{R+17+2*i}")
    for g in range(4):
        o(f"buffer_store_dwordx2 v[{vX+2*g}:{vX+2*g+1}], v{vXo}, s[{sOut}:{sOut+3}], 0 offen offset:{g*16}")
    o.label("L_k2_end")
    o("s_endpgm")
    nv = (V.hi + 7) // 8 * 8
    kernel_desc(o, name, nv, nv, 64)
    return 4 * D * WST

def main():
    out = sys.argv[1]
    for x in sys.argv[2:]:
        OPT[x] = True
    o = Asm()
    hdr = open("cdna_kernels/" + KN + ".s.ref").read().split("\n")
    for l in hdr:
        if l.startswith("; Override") : break
        o.raw(l)
    o.raw("; @launch kernel=ln_kernel grid=(512,1,1) block=(256,1,1) lds=0")
    o.raw(f"; @launch kernel=attn_kernel grid=(256,1,1) block=(256,1,1) lds={NS*SLOT}")
    o.raw(f"; @launch kernel=proj_kernel grid=(256,1,1) block=(256,1,1) lds={4*6*4352}")
    o.raw('.amdgcn_target "amdgcn-amd-amdhsa--gfx950"')
    gen_k0(o); gen_k1(o); gen_k2(o)
    open(out, "w").write(o.text())
main()
```
